```python
import torch

def _softmax(x, axis=-1):
    return torch.softmax(x, dim=axis)
def _gelu(x):
    return torch.nn.functional.gelu(x, approximate="tanh")
def _silu(x):
    return torch.nn.functional.silu(x)
def _sigmoid(x):
    return torch.sigmoid(x)
def _layernorm(x, axis=-1, eps=1e-5):
    m = x.mean(dim=axis, keepdim=True)
    v = x.var(dim=axis, keepdim=True, unbiased=False)
    return (x - m) / torch.sqrt(v + eps)
def _scatter_add(tgt, idx, src, axis=0):
    return tgt.clone().index_add_(axis, idx, src)
def _segment_sum(src, seg, n):
    out = torch.zeros((n,) + src.shape[1:], dtype=src.dtype)
    return out.index_add_(0, seg, src)
def _pad(x, pw):
    flat = tuple(v for pair in reversed(pw) for v in pair)
    return torch.nn.functional.pad(x, flat)

kernel_name = 'interleave_layers__softmax_full_mha__mixer_token_mlp__prompt'

def setup_inputs():

    _w = (lambda a: (lambda t: t.to(torch.bfloat16) if t.is_floating_point() else t)(torch.as_tensor(a)))
    def _A_setup():
        B, S, D = 1, 2048, 640
        return {
            "x": _w((lambda *s: torch.randn(*s, dtype=torch.bfloat16) * 0.05)(B, S, D)),
            "wqkv": _w((lambda *s: torch.randn(*s, dtype=torch.bfloat16) * 0.05)(D, 3 * D)),
            "wo": _w((lambda *s: torch.randn(*s, dtype=torch.bfloat16) * 0.05)(D, D)),
        }
    _A_in = _A_setup()

    def _B_setup():
        B, S, D, F = 1, 2048, 640, 1536
        return {
            "x": _w((lambda *s: torch.randn(*s, dtype=torch.bfloat16) * 0.05)(B, S, D)),
            "w1": _w((lambda *s: torch.randn(*s, dtype=torch.bfloat16) * 0.8)(S, F) * (S ** -0.5)),
            "b1": _w((lambda *s: torch.randn(*s, dtype=torch.bfloat16) * 12.8)(F) * 0.02),
            "w2": _w((lambda *s: torch.randn(*s, dtype=torch.bfloat16) * 0.4)(F, S) * (F ** -0.5)),
            "b2": _w((lambda *s: torch.randn(*s, dtype=torch.bfloat16) * 6.4)(S) * 0.02),
        }
    _B_in = _B_setup()

    return {
        "A_x": _A_in["x"],
        "A_wqkv": _A_in["wqkv"],
        "A_wo": _A_in["wo"],
        "B_x": _B_in["x"],
        "B_w1": _B_in["w1"],
        "B_b1": _B_in["b1"],
        "B_w2": _B_in["w2"],
        "B_b2": _B_in["b2"],
    }

def reference(A_x, A_wqkv, A_wo, B_x, B_w1, B_b1, B_w2, B_b2):
    def _A_ref(x, wqkv, wo):
        B, S, D = x.shape
        H = 32; Dh = D // H
        qkv = (lambda x, *d: x.permute(*d))((x @ wqkv).reshape(B, S, 3, H, Dh), 2, 0, 3, 1, 4)
        q, k, v = qkv[0], qkv[1], qkv[2]
        scale = Dh ** -0.5
        scores = torch.einsum("bhqd,bhkd->bhqk", q, k) * scale
        p = _softmax(scores, axis=-1)
        o = torch.einsum("bhqk,bhkd->bhqd", p, v)
        return (lambda x, *d: x.permute(*d))(o, 0, 2, 1, 3).reshape(B, S, D) @ wo

    def _B_ref(x, w1, b1, w2, b2):
        B, S, D = x.shape
        h = _layernorm(x, axis=-1)
        u = torch.einsum("bsd,sf->bdf", h, w1) + b1
        u = _gelu(u)
        y = torch.einsum("bdf,fs->bds", u, w2) + b2
        return (lambda x, *d: x.permute(*d))(y, 0, 2, 1)

    x = A_x
    x = x + _A_ref(_layernorm(x, axis=-1), A_wqkv, A_wo)
    x = x + _B_ref(_layernorm(x, axis=-1), B_w1, B_b1, B_w2, B_b2)
    x = x + _A_ref(_layernorm(x, axis=-1), A_wqkv, A_wo)
    x = x + _B_ref(_layernorm(x, axis=-1), B_w1, B_b1, B_w2, B_b2)
    return x
```

```python
import re

class Asm:
    def __init__(self):
        self.lines = []
    def __call__(self, s):
        for ln in s.split("\n"):
            ln = ln.strip()
            if ln:
                self.lines.append(ln)
    def label(self, name):
        self.lines.append(name + ":")
    def text(self):
        out = []
        for ln in self.lines:
            if ln.endswith(":") or ln.startswith("."):
                out.append(ln)
            else:
                out.append("    " + ln)
        return "\n".join(out) + "\n"

def vr(b, n=1, p="v"):
    return f"{p}{b}" if n == 1 else f"{p}[{b}:{b+n-1}]"
def ar(b, n=1):
    return vr(b, n, "a")
def sr(b, n=1):
    return vr(b, n, "s")

_REG = re.compile(r"(?<![\w.])([vas])(?:(\d+)|\[(\d+):(\d+)\])(?![\w])")
def regs_of(op):
    op = op.strip()
    out = set()
    for m in _REG.finditer(op):
        p = m.group(1)
        if m.group(2) is not None:
            out.add((p, int(m.group(2))))
        else:
            for i in range(int(m.group(3)), int(m.group(4)) + 1):
                out.add((p, i))
    if re.search(r"\bvcc\b", op): out |= {("s", "vcc_lo"), ("s", "vcc_hi")}
    if re.search(r"\bvcc_lo\b", op): out.add(("s", "vcc_lo"))
    if re.search(r"\bvcc_hi\b", op): out.add(("s", "vcc_hi"))
    if re.search(r"\bexec\b", op): out |= {("s", "exec")}
    if re.search(r"\bm0\b", op): out.add(("s", "m0"))
    return out

TRANS = ("v_exp_", "v_log_", "v_rcp_", "v_rsq_", "v_sqrt_", "v_sin_", "v_cos_")
def mfma_passes(mn):
    if "32x32x16" in mn or "32x32x8" in mn: return 8
    if "16x16x32" in mn or "16x16x16" in mn: return 4
    if "_2b_" in mn: return 16
    if "_4b_" in mn: return 8
    raise ValueError(mn)

class Ins:
    def __init__(self, text):
        self.text = text
        t = text.split(";")[0].strip()
        parts = t.split(None, 1)
        self.mn = parts[0]
        rest = parts[1] if len(parts) > 1 else ""
        ops, cur, d = [], "", 0
        for ch in rest:
            if ch == "[": d += 1
            if ch == "]": d -= 1
            if ch == "," and d == 0:
                ops.append(cur); cur = ""
            else:
                cur += ch
        if cur.strip(): ops.append(cur)
        self.ops = [o.strip() for o in ops]
        mn = self.mn
        self.is_mfma = mn.startswith("v_mfma")
        self.is_valu = mn.startswith("v_") and not self.is_mfma
        self.is_salu = mn.startswith("s_")
        self.is_ds = mn.startswith("ds_")
        self.is_vmem = mn.startswith(("buffer_", "global_", "flat_"))
        self.is_trans = mn.startswith(TRANS)
        self.is_dot = mn.startswith("v_dot")
        self.is_dpp = "_dpp" in mn or "row_" in rest or "quad_perm" in rest
        self.is_sdwa = "_sdwa" in mn
        self.is_perml = mn.startswith("v_permlane")
        self.is_lds_dma = (self.is_vmem and re.search(r"\blds\b", rest) is not None) or "load_lds" in mn
        self.w, self.r = set(), set()
        o = self.ops
        R = regs_of
        if self.is_mfma:
            self.w = R(o[0]); self.srcA = R(o[1]); self.srcB = R(o[2]); self.srcC = R(o[3].split()[0])
            self.r = self.srcA | self.srcB | self.srcC
            self.passes = mfma_passes(mn)
        elif self.is_valu:
            if mn.startswith("v_cmpx"):
                self.w = R(o[0]) | {("s", "exec")}; self.r = set().union(*[R(x) for x in o[1:]])
            elif mn.startswith("v_nop"):
                pass
            elif self.is_perml and "swap" in mn:
                self.w = R(o[0]) | R(o[1]); self.r = set(self.w)
            elif mn.startswith(("v_add_co", "v_sub_co", "v_subrev_co", "v_addc_co", "v_subb_co", "v_div_scale", "v_mad_u64_u32")):
                self.w = R(o[0]) | R(o[1]); self.r = set().union(*[R(x) for x in o[2:]])
            else:
                self.w = R(o[0]); self.r = set().union(*[R(x) for x in o[1:]]) if len(o) > 1 else set()
                if mn.startswith(("v_fmac", "v_dot2c", "v_pk_fmac", "v_writelane")) or "UNUSED_PRESERVE" in rest or (self.is_dpp):
                    self.r |= R(o[0])
        elif self.is_ds:
            if mn.startswith(("ds_read", "ds_bpermute", "ds_permute", "ds_swizzle")) or "_rtn" in mn:
                self.w = R(o[0]); self.r = set().union(*[R(x) for x in o[1:]]) if len(o) > 1 else set()
            else:
                self.r = set().union(*[R(x) for x in o])
            if "addtid" in mn: self.r.add(("s", "m0"))
        elif self.is_vmem:
            if self.is_lds_dma:
                self.r = set().union(*[R(x) for x in o]) | {("s", "m0")}
            elif "load" in mn:
                self.w = R(o[0]); self.r = set().union(*[R(x) for x in o[1:]])
            elif mn.startswith(("buffer_wbl2", "buffer_inv")):
                pass
            else:
                self.r = set().union(*[R(x) for x in o])
                self.store_data = R(o[0]) if mn.startswith("buffer_") else R(o[1])
                if "atomic" in mn and re.search(r"\bsc0\b", rest): self.w = self.store_data
        elif self.is_salu:
            if mn.startswith(("s_cmp", "s_cbranch", "s_branch", "s_waitcnt", "s_barrier", "s_nop", "s_endpgm", "s_setprio", "s_sleep", "s_bitcmp")):
                self.r = set().union(*[R(x) for x in o]) if o else set()
            else:
                self.w = R(o[0]); self.r = set().union(*[R(x) for x in o[1:]]) if len(o) > 1 else set()
                if "saveexec" in mn: self.w.add(("s", "exec"))
        self.states = 1
        if mn == "s_nop": self.states = int(o[0], 0) + 1
        self.wide_store = self.is_vmem and ("store_dwordx3" in mn or "store_dwordx4" in mn)

def need(p, c):
    n = 0
    vw = {x for x in p.w if x[0] in "va"}
    sw = {x for x in p.w if x[0] == "s"}
    if p.is_mfma:
        P = p.passes
        idx = {2: 0, 4: 1, 8: 2, 16: 3}[P]
        if c.is_mfma:
            if c.srcC & p.w:
                if c.srcC == p.w and c.passes == P: n = max(n, [2, 0, 0, 0][idx])
                else: n = max(n, [4, 6, 10, 18][idx])
            if (c.srcA | c.srcB) & p.w: n = max(n, [5, 8, 12, 20][idx])
            if (c.w & p.w) and not (c.srcC & p.w): n = max(n, [4, 6, 10, 18][idx])
        elif (c.r | c.w) & p.w and (c.is_valu or c.is_vmem or c.is_ds):
            n = max(n, [5, 8, 12, 20][idx])
        if c.is_valu and (c.w & p.srcC): n = max(n, [1, 3, 7, 15][idx])
        if (c.is_ds or c.is_vmem) and (c.w & p.srcC): n = max(n, [1, 3, 7, 15][idx])
    if p.is_valu:
        if c.is_mfma and (c.r & vw): n = max(n, 3 if p.is_dot else 2)
        if c.is_mfma and ("s", "exec") in sw: n = max(n, 4)
        if p.is_trans and c.is_valu and not c.is_trans and (c.r & vw): n = max(n, 1)
        if p.is_trans and (c.is_ds or c.is_vmem) and (c.r & vw): n = max(n, 1)
        if c.is_dpp and (c.r & vw): n = max(n, 2)
        if c.is_dpp and ("s", "exec") in sw: n = max(n, 5)
        if c.is_perml and (c.r & vw): n = max(n, 2)
        if c.is_perml and ("s", "exec") in sw: n = max(n, 4)
        if c.mn.startswith(("v_readlane", "v_readfirstlane")) and (c.r & vw): n = max(n, 1)
        if c.mn.startswith(("v_readlane", "v_readfirstlane", "v_writelane")) and ("s", "exec") in sw: n = max(n, 4)
        if c.mn.startswith(("v_readlane", "v_writelane")) and (c.r & sw): n = max(n, 4)
        if c.is_vmem and (c.r & sw): n = max(n, 5)
        if c.is_valu and (c.r & sw): n = max(n, 2)
        if c.is_salu and (c.r & sw): n = max(n, 1)
        if p.is_sdwa and c.is_valu and ((c.r | c.w) & vw): n = max(n, 1)
        if p.is_dot and (c.is_valu or c.is_ds or c.is_vmem) and ((c.r | c.w) & vw):
            if c.mn == p.mn and not (set().union(*[regs_of(x) for x in c.ops[1:3]]) & vw): pass
            else: n = max(n, 3)
        if c.mn.startswith("v_div_fmas") and (("s", "vcc_lo") in sw): n = max(n, 4)
    if p.is_salu and ("s", "m0") in p.w and (c.is_lds_dma or "addtid" in c.mn): n = max(n, 1)
    if getattr(p, "wide_store", False) and (c.w & p.store_data): n = max(n, 2 if c.is_valu else 1)
    return n

def check_seq(seq, errs, tag=""):
    for j in range(len(seq)):
        c = seq[j]
        dist = 0
        for i in range(j - 1, max(-1, j - 24), -1):
            p = seq[i]
            k = need(p, c)
            if k > dist:
                errs.append(f"{tag}hazard: need {k} have {dist}: [{p.text}] -> [{c.text}]")
            dist += p.states
            if dist >= 20: break

def check_hazards(lines):
    ins, labels = [], {}
    for ln in lines:
        t = ln.split(";")[0].strip()
        if not t or t.startswith("."): continue
        if t.endswith(":"):
            labels[t[:-1]] = len(ins); continue
        ins.append(Ins(t))
    errs = []
    seg = []
    for x in ins:
        seg.append(x)
        if x.mn in ("s_branch", "s_endpgm"):
            check_seq(seg, errs); seg = []
    check_seq(seg, errs)
    for i, x in enumerate(ins):
        if x.mn.startswith(("s_cbranch", "s_branch")):
            tgt = labels[x.ops[0]]
            a = ins[max(0, i - 24): i + 1]
            b = []
            for y in ins[tgt: tgt + 24]:
                b.append(y)
                if y.mn in ("s_branch", "s_endpgm"): break
            e2 = []
            check_seq(a + b, e2, "edge ")
            errs += [e for e in e2 if e.replace("edge ", "") not in errs]
    return sorted(set(errs))
```

```python
from asmlib import *
S, D, H, DH, F = 2048, 640, 32, 20, 1536
WS_QLO = 0x0
WS_QHI = 0x200000
WS_KV  = 0x300000
WS_O   = 0x800000
WS_X1T = 0xB00000
WS_HT  = 0xE00000
WS_U   = 0x1100000
WS_STAT= 0x1300000
WS_END = 0x1400000
OOB = 0x80000000
KA = dict(x=0, wqkv=8, wo=16, bx=24, w1=32, b1=40, w2=48, b2=56, out=64, dbg=72, ws=80)

def srd(a, d, p, nbytes):
    a(f"s_mov_b32 s{d}, s{p}")
    a(f"s_mov_b32 s{d+1}, s{p+1}")
    a(f"s_mov_b32 s{d+2}, {nbytes:#x}")
    a(f"s_mov_b32 s{d+3}, 0x20000")

def kernel_head(a, name):
    a(f".globl {name}")
    a(".p2align 8")
    a(f".type {name},@function")
    a.label(name)

def descriptor(name, vgpr, accum, sgpr=96):
    return f""".amdhsa_kernel {name}
  .amdhsa_next_free_vgpr {vgpr}
  .amdhsa_next_free_sgpr {sgpr}
  .amdhsa_accum_offset {accum}
  .amdhsa_group_segment_fixed_size 0
  .amdhsa_kernarg_size 88
  .amdhsa_user_sgpr_count 2
  .amdhsa_user_sgpr_kernarg_segment_ptr 1
  .amdhsa_system_sgpr_workgroup_id_x 1
.end_amdhsa_kernel
"""

def interleave(main, fill):
    out = []
    n, m = len(main), len(fill)
    k = 0
    for i, x in enumerate(main):
        out.append(x)
        want = (i + 1) * m // n
        while k < want:
            out.append(fill[k]); k += 1
    return out

def f32(x):
    import struct
    return struct.unpack("<I", struct.pack("<f", x))[0]
```

```python
from common import *

def gen_attn(a):
    kernel_head(a, "attn_kernel")
    a(f"s_load_dwordx2 s[8:9], s[0:1], {KA['ws']}")
    a("s_cmp_ge_u32 s2, 256")
    a("s_cbranch_scc1 L_attn_end")
    Q1 = [0, 8]; Q2 = [4, 12]
    K1, K2 = 16, 20
    V0, V1 = 24, 28
    Sx = [32, 48]
    Px = [64, 72]
    Ox = [80, 96]
    vl, vk1, vk2, vv = 112, 113, 114, 115
    vm = [116, 117]
    t0, t1, t2, t3, t4, t5 = 118, 119, 120, 121, 122, 123
    vdma = 124
    sw, sqg, skh, shead, sqb = 24, 25, 26, 27, 28
    skv = 29
    a(f"v_and_b32 v{vl}, 63, v0")
    a(f"v_lshrrev_b32 v{t0}, 6, v0")
    a(f"v_lshlrev_b32 v{vk1}, 4, v{vl}")
    a(f"v_readfirstlane_b32 s{sw}, v{t0}")
    a("s_and_b32 s30, s2, 7")
    a("s_lshl_b32 s30, s30, 2")
    a("s_bfe_u32 s31, s2, 0x20003")
    a(f"s_add_u32 s{shead}, s30, s31")
    a(f"s_lshr_b32 s{sqb}, s2, 5")
    a(f"s_and_b32 s{sqg}, s{sw}, 3")
    a(f"s_lshr_b32 s{skh}, s{sw}, 2")
    sqa, sqbb = 33, 34
    a(f"s_lshl_b32 s30, s{sqb}, 3")
    a(f"s_lshl_b32 s31, s{sqg}, 1")
    a("s_add_u32 s30, s30, s31")
    a(f"s_add_u32 s{sqa}, s30, s{skh}")
    a(f"s_xor_b32 s{sqbb}, s{sqa}, 1")
    a(f"s_lshl_b32 s30, s{shead}, 6")
    a(f"s_add_u32 s35, s30, s{sqa}")
    a(f"s_add_u32 s36, s30, s{sqbb}")
    a(f"s_lshl_b32 s37, s35, 8")
    a(f"s_lshl_b32 s38, s36, 8")
    a(f"s_add_u32 s37, s37, {WS_QHI:#x}")
    a(f"s_add_u32 s38, s38, {WS_QHI:#x}")
    a("s_lshl_b32 s35, s35, 10")
    a("s_lshl_b32 s36, s36, 10")
    a(f"v_lshlrev_b32 v{t0}, 3, v{vl}")
    a(f"v_mov_b32 v{t1}, {OOB:#x}")
    a(f"v_cmp_gt_u32 vcc, 32, v{vl}")
    a(f"s_mul_i32 s30, s{skh}, 81920")
    a(f"s_lshl_b32 s31, s{sqg}, 10")
    a("s_add_u32 s30, s30, s31")
    a("s_mov_b32 m0, s30")
    a(f"v_cndmask_b32 v{t0}, v{t1}, v{t0}, vcc")
    a(f"s_mul_i32 s{skv}, s{shead}, 163840")
    a(f"s_add_u32 s{skv}, s{skv}, {WS_KV:#x}")
    a(f"s_add_u32 s39, s{skv}, s30")
    a("s_waitcnt lgkmcnt(0)")
    srd(a, 20, 8, WS_END)
    def dma():
        a(f"buffer_load_dwordx4 v{vk1}, s[20:23], s39 offen lds")
        a("s_add_u32 m0, m0, 4096")
        a("s_add_u32 s39, s39, 4096")
    dma()
    a(f"buffer_load_dwordx4 {vr(Q1[0],4)}, v{vk1}, s[20:23], s35 offen")
    a(f"buffer_load_dwordx2 {vr(Q2[0],2)}, v{t0}, s[20:23], s37 offen")
    a(f"buffer_load_dwordx4 {vr(Q1[1],4)}, v{vk1}, s[20:23], s36 offen")
    a(f"buffer_load_dwordx2 {vr(Q2[1],2)}, v{t0}, s[20:23], s38 offen")
    for n in range(1, 20): dma()
    a(f"s_lshl_b32 s30, s2, 9")
    a(f"s_lshl_b32 s31, s{sw}, 6")
    a("s_add_u32 s30, s30, s31")
    a(f"s_add_u32 s30, s30, {WS_STAT:#x}")
    a(f"v_cmp_gt_u32 vcc, 8, v{vl}")
    a(f"v_lshlrev_b32 v{t2}, 3, v{vl}")
    a(f"v_mov_b32 v{t4}, -1")
    a(f"v_mov_b32 v{t5}, -1")
    a(f"v_cndmask_b32 v{t2}, v{t1}, v{t2}, vcc")
    a(f"buffer_store_dwordx2 {vr(t4,2)}, v{t2}, s[20:23], s30 offen")
    a(f"v_and_b32 v{t0}, 31, v{vl}")
    a(f"v_lshlrev_b32 v{vk2}, 3, v{t0}")
    a(f"v_lshrrev_b32 v{t1}, 5, v{vl}")
    a(f"v_mul_u32_u24 v{t1}, 20, v{t1}")
    a(f"v_add_lshl_u32 v{vv}, v{t1}, v{t0}, 4")
    for q in (0, 1):
        a(f"v_mov_b32 v{Q2[q]+2}, 0")
        a(f"v_mov_b32 v{Q2[q]+3}, 0")
    a(f"v_mov_b32 v{K2+2}, 0x3f80")
    a(f"v_mov_b32 v{K2+3}, 0")
    for i in range(8): a(f"v_mov_b32 v{V0+i}, 0x3f803f80")
    smask = 40
    a(f"s_mov_b32 s{smask}, 0x000fffff")
    a(f"s_mov_b32 s{smask+1}, 0x000fffff")
    a("s_waitcnt vmcnt(19)")
    a("s_barrier")
    def mf(d, A, B, C):
        return f"v_mfma_f32_32x32x16_bf16 {vr(d,16)}, {vr(A,4)}, {vr(B,4)}, {C}"
    def qk(q):
        return [mf(Sx[q], K1, Q1[q], "0"), mf(Sx[q], K2, Q2[q], vr(Sx[q],16))]
    def pv(q, first=False):
        return [mf(Ox[q], V0, Px[q], "0" if first else vr(Ox[q],16)), mf(Ox[q], V1, Px[q]+4, vr(Ox[q],16))]
    def rdk(off):
        return [f"ds_read_b128 {vr(K1,4)}, v{vk1} offset:{off}", f"ds_read_b64 {vr(K2,2)}, v{vk2} offset:{off+1024}"]
    def rdv(off):
        return [f"s_mov_b64 exec, s[{smask}:{smask+1}]",
                f"ds_read_b128 {vr(V0,4)}, v{vv} offset:{off+1280}", f"ds_read_b128 {vr(V1,4)}, v{vv} offset:{off+1920}",
                "s_mov_b64 exec, -1"]
    def colmax(q, dst, init=None):
        s = Sx[q]
        if init is None:
            a(f"v_max3_f32 v{dst}, v{s}, v{s+1}, v{s+2}")
            a(f"v_max_f32 v{dst}, v{dst}, v{s+3}")
            rng = range(4, 16, 2)
        else:
            rng = range(0, 16, 2)
        for i in rng: a(f"v_max3_f32 v{dst}, v{dst}, v{s+i}, v{s+i+1}")
    def xhalf_max(regs):
        for i, r in enumerate(regs): a(f"v_mov_b32 v{t0+i}, v{r}")
        a("s_nop 1")
        for i, r in enumerate(regs): a(f"v_permlane32_swap_b32 v{r}, v{t0+i}")
        for i, r in enumerate(regs): a(f"v_max_f32 v{r}, v{r}, v{t0+i}")
    for x in rdk(0): a(x)
    a("s_waitcnt lgkmcnt(0)")
    for x in qk(0) + qk(1): a(x)
    a(f"s_mul_i32 s30, s{skh}, 81920")
    a(f"v_add_u32 v{vk1}, s30, v{vk1}")
    a(f"v_add_u32 v{vk2}, s30, v{vk2}")
    a(f"v_add_u32 v{vv}, s30, v{vv}")
    for x in rdk(0): a(x)
    for x in rdv(0): a(x)
    a("s_nop 2")
    colmax(0, vm[0]); colmax(1, vm[1])
    xhalf_max(vm)
    a(f"v_cmp_gt_u32 vcc, 32, v{vl}")
    for q in (0, 1):
        a(f"v_cvt_pk_bf16_f32 v{t0+q}, -v{vm[q]}, 0")
    for q in (0, 1):
        a(f"v_cndmask_b32 v{Q2[q]+2}, 0, v{t0+q}, vcc")
        a(f"v_lshlrev_b32 v{vm[q]}, 16, v{t0+q}")
        a(f"v_xor_b32 v{vm[q]}, 0x80000000, v{vm[q]}")
    a("s_waitcnt lgkmcnt(0)")
    for x in qk(0): a(x)
    def softmax(q):
        s, p = Sx[q], Px[q]
        e = [f"v_exp_f32 v{s+i}, v{s+i}" for i in range(16)]
        c = [f"v_cvt_pk_bf16_f32 v{p+i}, v{s+2*i}, v{s+2*i+1}" for i in range(8)]
        g = [e[0:6], e[6:10] + c[0:2], e[10:14] + c[2:4], e[14:16] + c[4:8]]
        return g
    NT = 32
    base = 0
    for t in range(NT):
        g = softmax(0)
        m = qk(1) + (pv(1, t == 1) if t > 0 else [None, None])
        pre = []
        if t == 2: pre = ["s_waitcnt vmcnt(15)", "s_barrier"]
        if t == 8: pre = ["s_waitcnt vmcnt(0)", "s_barrier"]
        if t == 16:
            pass
        a(m[0])
        if t == 0: a("s_nop 7"); a("s_nop 2")
        for x in g[0]: a(x)
        a(m[1])
        for x in pre: a(x)
        if t + 1 < NT:
            if t + 1 == 16:
                a(f"v_add_u32 v{vk1}, {16*2560}, v{vk1}")
                a(f"v_add_u32 v{vk2}, {16*2560}, v{vk2}")
            for x in rdk(((t+1) % 16) * 2560): a(x)
        for x in g[1]: a(x)
        if m[2]: a(m[2])
        for x in g[2]: a(x)
        if m[3]: a(m[3])
        if t > 0:
            if t == 16: a(f"v_add_u32 v{vv}, {16*2560}, v{vv}")
            for x in rdv((t % 16) * 2560): a(x)
        for x in g[3]: a(x)
        g = softmax(1)
        m = (qk(0) if t + 1 < NT else [None, None]) + pv(0, t == 0)
        if t + 1 < NT:
            a(f"s_waitcnt lgkmcnt({2 if t > 0 else 0})")
            a(m[0])
        for x in g[0]: a(x)
        if m[1]: a(m[1])
        for x in g[1]: a(x)
        a("s_waitcnt lgkmcnt(0)")
        a(m[2])
        for x in g[2]: a(x)
        a(m[3])
        for x in g[3]: a(x)
    a("s_nop 1")
    for x in pv(1): a(x)
    a(f"v_mov_b32 v{t0}, {f32(2.0**100):#x}")
    a("s_mov_b64 s[42:43], 0")
    a("s_nop 7")
    a("s_nop 1")
    for q in (0, 1):
        for r in range(9):
            a(f"v_cmp_nlt_f32 vcc, |v{Ox[q]+r}|, v{t0}")
            a("s_nop 0")
            a("s_or_b64 s[42:43], s[42:43], vcc")
        for r in range(9, 12):
            a(f"v_cmp_nlt_f32 vcc, |v{Ox[q]+r}|, v{t0}")
            a("s_nop 0")
            a("s_or_b32 s42, s42, vcc_lo")
    a("s_cmp_lg_u64 s[42:43], 0")
    a("s_cbranch_scc1 L_attn_slow")
    a.label("L_attn_join")
    a(f"s_mul_i32 s30, s{skh}, 81920")
    a(f"s_lshl_b32 s31, s{sqg}, 12")
    a("s_add_u32 s30, s30, s31")
    a(f"v_lshl_add_u32 v{t0}, v{vl}, 4, s30")
    a(f"s_xor_b32 s30, s{skh}, 1")
    a(f"s_mul_i32 s30, s30, 81920")
    a("s_add_u32 s30, s30, s31")
    a(f"v_lshl_add_u32 v{t1}, v{vl}, 4, s30")
    for i in range(3): a(f"ds_write_b128 v{t0}, {vr(Ox[1]+4*i,4)} offset:{i*1024}")
    a(f"ds_write_b32 v{t0}, v{vm[1]} offset:3072")
    a(f"v_and_b32 v{t2}, 15, v{vl}")
    a(f"v_bfe_u32 v{t3}, v{vl}, 4, 1")
    a(f"v_mul_u32_u24 v{t3}, 20480, v{t3}")
    a(f"v_lshl_add_u32 v{t2}, v{t2}, 4, v{t3}")
    a(f"s_mul_i32 s30, s{sqa}, 40960")
    a(f"s_add_u32 s30, s30, {WS_O:#x}")
    a(f"s_mul_i32 s31, s{shead}, 5")
    a(f"v_lshrrev_b32 v{t3}, 5, v{vl}")
    a(f"v_add_u32 v{t3}, s31, v{t3}")
    a("s_waitcnt lgkmcnt(0)")
    a("s_barrier")
    for i in range(3): a(f"ds_read_b128 {vr(Ox[1]+4*i,4)}, v{t1} offset:{i*1024}")
    a(f"ds_read_b32 v{vm[1]}, v{t1} offset:3072")
    AD = Sx[0]
    for m in range(3):
        a(f"v_add_u32 v{t4}, {2*m}, v{t3}")
        a(f"v_lshrrev_b32 v{t5}, 1, v{t4}")
        a(f"v_xor_b32 v{t4}, v{t4}, v{t5}")
        a(f"v_and_b32 v{t4}, 1, v{t4}")
        a(f"v_lshl_add_u32 v{t5}, v{t5}, 8, v{t2}")
        a(f"v_lshl_add_u32 v{AD+m}, v{t4}, 3, v{t5}")
    a(f"v_cmp_gt_u32 vcc, 32, v{vl}")
    a(f"v_mov_b32 v{t4}, {OOB:#x}")
    a("s_nop 0")
    a(f"v_cndmask_b32 v{AD+2}, v{t4}, v{AD+2}, vcc")
    a("s_waitcnt lgkmcnt(0)")
    a(f"v_max_f32 v{t0}, v{vm[0]}, v{vm[1]}")
    a(f"v_sub_f32 v{t4}, v{vm[0]}, v{t0}")
    a(f"v_sub_f32 v{t2}, v{vm[1]}, v{t0}")
    a(f"v_exp_f32 v{t4}, v{t4}")
    a(f"v_exp_f32 v{t2}, v{t2}")
    a("s_nop 0")
    for i in range(0, 12, 2):
        a(f"v_pk_mul_f32 {vr(Ox[0]+i,2)}, {vr(Ox[0]+i,2)}, {vr(t4,2)} op_sel_hi:[1,0]")
    for i in range(0, 12, 2):
        a(f"v_pk_fma_f32 {vr(Ox[0]+i,2)}, {vr(Ox[1]+i,2)}, {vr(t2,2)}, {vr(Ox[0]+i,2)} op_sel_hi:[1,0,1]")
    a(f"v_mov_b32 v{t0}, v{Ox[0]+8}")
    a(f"v_mov_b32 v{t1}, v{Ox[0]+8}")
    a("s_nop 1")
    a(f"v_permlane32_swap_b32 v{t0}, v{t1}")
    a(f"v_rcp_f32 v{t0}, v{t1}")
    a("s_nop 0")
    for i in range(0, 12, 2):
        a(f"v_pk_mul_f32 {vr(Ox[0]+i,2)}, {vr(Ox[0]+i,2)}, {vr(t0,2)} op_sel_hi:[1,0]")
    for i in range(6):
        a(f"v_cvt_pk_bf16_f32 v{Px[0]+i}, v{Ox[0]+2*i}, v{Ox[0]+2*i+1}")
    for m in range(3):
        a(f"buffer_store_dwordx2 {vr(Px[0]+2*m,2)}, v{AD+m}, s[20:23], s30 offen")
    a.label("L_attn_end")
    a("s_endpgm")
    a.label("L_attn_slow")
    a(f"v_lshlrev_b32 v{vk1}, 4, v{vl}")
    a(f"v_and_b32 v{t0}, 31, v{vl}")
    a(f"v_lshlrev_b32 v{vk2}, 3, v{t0}")
    a(f"v_lshrrev_b32 v{t1}, 5, v{vl}")
    a(f"v_mul_u32_u24 v{t1}, 20, v{t1}")
    a(f"v_add_lshl_u32 v{vv}, v{t1}, v{t0}, 4")
    for q in (0, 1):
        a(f"v_mov_b32 v{Q2[q]+2}, 0")
        a(f"v_mov_b32 v{vm[q]}, 0xff800000")
    a(f"s_mul_i32 s30, s{skh}, 81920")
    a(f"s_add_u32 s44, s{skv}, s30")
    a("s_mov_b32 s45, s44")
    a("s_mov_b32 s46, 32")
    def ldk():
        a(f"buffer_load_dwordx4 {vr(K1,4)}, v{vk1}, s[20:23], s45 offen")
        a(f"buffer_load_dwordx2 {vr(K2,2)}, v{vk2}, s[20:23], s45 offen offset:1024")
    a.label("L_attn_s1")
    ldk()
    a("s_waitcnt vmcnt(0)")
    for x in qk(0) + qk(1): a(x)
    a("s_nop 7"); a("s_nop 7")
    colmax(0, vm[0], True); colmax(1, vm[1], True)
    a("s_add_u32 s45, s45, 2560")
    a("s_sub_u32 s46, s46, 1")
    a("s_cmp_lg_u32 s46, 0")
    a("s_cbranch_scc1 L_attn_s1")
    xhalf_max(vm)
    for q in (0, 1):
        for i in range(16): a(f"v_mov_b32 v{Ox[q]+i}, 0")
    a("s_mov_b32 s45, s44")
    a("s_mov_b32 s46, 32")
    a.label("L_attn_s2")
    ldk()
    a(f"s_mov_b64 exec, s[{smask}:{smask+1}]")
    a(f"buffer_load_dwordx4 {vr(V0,4)}, v{vv}, s[20:23], s45 offen offset:1280")
    a(f"buffer_load_dwordx4 {vr(V1,4)}, v{vv}, s[20:23], s45 offen offset:1920")
    a("s_mov_b64 exec, -1")
    a("s_waitcnt vmcnt(0)")
    for x in qk(0) + qk(1): a(x)
    a("s_nop 7"); a("s_nop 7")
    for q in (0, 1):
        for i in range(16): a(f"v_sub_f32 v{Sx[q]+i}, v{Sx[q]+i}, v{vm[q]}")
        for gg in softmax(q):
            for x in gg: a(x)
    a("s_nop 1")
    for x in pv(0) + pv(1): a(x)
    a("s_add_u32 s45, s45, 2560")
    a("s_sub_u32 s46, s46, 1")
    a("s_cmp_lg_u32 s46, 0")
    a("s_cbranch_scc1 L_attn_s2")
    a("s_nop 7"); a("s_nop 7")
    a("s_branch L_attn_join")
    return descriptor("attn_kernel", 128, 128)
```

```python
from common import *

DEP = 8
def gen_g1(a):
    kernel_head(a, "g1_kernel")
    a(f"s_load_dwordx4 s[4:7], s[0:1], {KA['w1']}")
    a(f"s_load_dwordx2 s[8:9], s[0:1], {KA['ws']}")
    a("s_cmp_ge_u32 s2, 240")
    a("s_cbranch_scc1 L_g1_end")
    HF = 0
    ACC = 64
    AF = 128
    BI = 144
    T = 152
    vl, vd0, vd1, vh, vtr = T, T+1, T+2, T+3, T+4
    t0, t1, t2, t3, t4, t5 = T+6, T+7, T+8, T+9, T+10, T+11
    sw, sdt, sft = 24, 25, 26
    a(f"v_and_b32 v{vl}, 63, v0")
    a(f"v_lshrrev_b32 v{t0}, 6, v0")
    a(f"v_lshrrev_b32 v{t1}, 3, v{vl}")
    a(f"v_readfirstlane_b32 s{sw}, v{t0}")
    a("s_lshr_b32 s30, s2, 3")
    a("s_mul_i32 s31, s30, 52")
    a("s_lshr_b32 s31, s31, 8")
    a("s_mul_i32 s33, s31, 5")
    a("s_sub_u32 s30, s30, s33")
    a("s_and_b32 s33, s2, 1")
    a("s_mul_i32 s33, s33, 5")
    a(f"s_add_u32 s{sdt}, s33, s30")
    a("s_bfe_u32 s33, s2, 0x20001")
    a("s_mul_i32 s33, s33, 6")
    a(f"s_add_u32 s{sft}, s33, s31")
    a(f"v_and_b32 v{t2}, 7, v{vl}")
    a(f"v_and_b32 v{t3}, 2, v{t1}")
    a(f"v_lshlrev_b32 v{t3}, 1, v{t3}")
    a(f"v_xor_b32 v{t2}, v{t2}, v{t3}")
    a(f"v_mul_u32_u24 v{t1}, 3072, v{t1}")
    a(f"v_lshl_add_u32 v{vd0}, v{t2}, 4, v{t1}")
    a(f"v_add_u32 v{vd1}, {8*3072-1024}, v{vd0}")
    a(f"v_lshlrev_b32 v{vh}, 4, v{vl}")
    swk, sh0, sh1, sm0 = 27, 28, 29, 34
    a(f"s_mul_i32 s{swk}, s{sw}, {512*3072}")
    a(f"s_lshl_b32 s30, s{sft}, 7")
    a(f"s_add_u32 s{swk}, s{swk}, s30")
    a(f"s_and_b32 s30, s{sw}, 1")
    a(f"s_lshl_b32 s31, s{sdt}, 1")
    a("s_add_u32 s35, s31, s30")
    a("s_xor_b32 s36, s35, 1")
    a(f"s_lshl_b32 s33, s{sw}, 15")
    a(f"s_add_u32 s33, s33, {WS_HT:#x}")
    a(f"s_lshl_b32 s{sh0}, s35, 17")
    a(f"s_lshl_b32 s{sh1}, s36, 17")
    a(f"s_add_u32 s{sh0}, s{sh0}, s33")
    a(f"s_add_u32 s{sh1}, s{sh1}, s33")
    a(f"s_lshl_b32 s{sm0}, s{sw}, 14")
    a(f"s_mov_b32 m0, s{sm0}")
    a(f"s_lshr_b32 s30, s{sw}, 1")
    a(f"s_lshl_b32 s31, s{sft}, 1")
    a("s_add_u32 s37, s31, s30")
    a("s_lshl_b32 s38, s37, 6")
    a(f"v_lshrrev_b32 v{t4}, 5, v{vl}")
    a(f"v_lshlrev_b32 v{t5}, 4, v{t4}")
    a("s_waitcnt lgkmcnt(0)")
    srd(a, 12, 4, S*F*2)
    srd(a, 16, 6, F*2)
    srd(a, 20, 8, WS_END)
    a(f"buffer_load_dwordx4 {vr(BI,4)}, v{t5}, s[16:19], s38 offen")
    a(f"buffer_load_dwordx4 {vr(BI+4,4)}, v{t5}, s[16:19], s38 offen offset:32")
    def dma(t):
        o = [f"buffer_load_dwordx4 v{vd0}, s[12:15], s{swk} offen lds",
             f"buffer_load_dwordx4 v{vd1}, s[12:15], s{swk} offen offset:1024 lds",
             f"s_add_u32 s{swk}, s{swk}, {16*3072}"]
        if (t + 1) % DEP == 0: o.append(f"s_mov_b32 m0, s{sm0}")
        else: o.append("s_add_u32 m0, m0, 2048")
        return o
    def ldh(t):
        r = HF + (t % DEP) * 8
        o = [f"buffer_load_dwordx4 {vr(r,4)}, v{vh}, s[20:23], s{sh0} offen offset:{(t%4)*1024}",
             f"buffer_load_dwordx4 {vr(r+4,4)}, v{vh}, s[20:23], s{sh1} offen offset:{(t%4)*1024}"]
        if t % 4 == 3:
            o += [f"s_add_u32 s{sh0}, s{sh0}, 4096", f"s_add_u32 s{sh1}, s{sh1}, 4096"]
        return o
    for t in range(DEP):
        for x in dma(t) + ldh(t): a(x)
    a(f"v_bfe_u32 v{t0}, v{vl}, 2, 2")
    a(f"v_lshl_add_u32 v{t1}, v{t4}, 3, v{t0}")
    a(f"v_lshlrev_b32 v{t1}, 7, v{t1}")
    a(f"v_and_b32 v{t2}, 1, v{vl}")
    a(f"v_lshlrev_b32 v{t2}, 4, v{t2}")
    a(f"v_and_b32 v{t3}, 2, v{vl}")
    a(f"v_lshl_add_u32 v{t2}, v{t3}, 2, v{t2}")
    a(f"v_and_b32 v{t3}, 16, v{vl}")
    a(f"v_lshl_add_u32 v{t2}, v{t3}, 1, v{t2}")
    a(f"v_and_b32 v{t3}, 2, v{t0}")
    a(f"v_lshl_add_u32 v{t2}, v{t3}, 5, v{t2}")
    a(f"s_lshl_b32 s30, s30, 6")
    a(f"v_xor_b32 v{t2}, s30, v{t2}")
    a(f"v_add3_u32 v{vtr}, v{t1}, v{t2}, s{sm0}")
    a(f"v_xor_b32 v{vtr+1}, 64, v{vtr}")
    a(f"s_waitcnt vmcnt({4*DEP})")
    for i in range(8):
        a(f"v_lshlrev_b32 v{ACC+2*i}, 16, v{BI+i}")
        a(f"v_and_b32 v{ACC+2*i+1}, 0xffff0000, v{BI+i}")
    def reads(t):
        p = AF + (t & 1) * 8
        return [f"ds_read_b64_tr_b16 {vr(p+fb*4+h*2,2)}, v{vtr+fb} offset:{(t%DEP)*2048+h*512}" for fb in range(2) for h in range(2)]
    NS = 32
    a(f"s_waitcnt vmcnt({4*(DEP-1)})")
    for x in reads(0): a(x)
    for t in range(NS):
        p = AF + (t & 1) * 8
        hr = HF + (t % DEP) * 8
        last = min(t + DEP - 1, NS - 1)
        if t + 1 < NS:
            a(f"s_waitcnt vmcnt({4*(last-(t+1))}) lgkmcnt(0)")
            for x in reads(t + 1): a(x)
        else:
            a("s_waitcnt lgkmcnt(0)")
        mf = []
        for fb in range(2):
            for db in range(2):
                acc = vr(ACC + (fb*2+db)*16, 16)
                c = "0" if (t == 0 and fb + db > 0) else acc
                mf.append(f"v_mfma_f32_32x32x16_bf16 {acc}, {vr(p+fb*4,4)}, {vr(hr+db*4,4)}, {c}")
        a(mf[0])
        if t + DEP < NS:
            for x in dma(t + DEP): a(x)
        a(mf[1]); a(mf[2]); a(mf[3])
        if t + DEP < NS:
            for x in ldh(t + DEP): a(x)
    a(f"v_add_u32 v{t0}, s{sm0}, v{vh}")
    a(f"v_and_b32 v{t1}, 31, v{vl}")
    a("s_lshl_b32 s30, s35, 5")
    a(f"v_add_u32 v{t1}, s30, v{t1}")
    a(f"v_mul_u32_u24 v{t2}, 820, v{t1}")
    a(f"v_lshrrev_b32 v{t2}, 16, v{t2}")
    a(f"v_mul_u32_u24 v{t3}, 80, v{t2}")
    a(f"v_sub_u32 v{t1}, v{t1}, v{t3}")
    a("s_nop 3")
    for q in range(1, 4):
        for i in range(4):
            a(f"ds_write_b128 v{t0}, {vr(ACC+q*16+i*4,4)} offset:{(q-1)*4096+i*1024}")
    a(f"v_lshrrev_b32 v{t3}, 5, v{t1}")
    a(f"v_lshlrev_b32 v{t3}, 11, v{t3}")
    a(f"v_and_b32 v{t5}, 4, v{t1}")
    a(f"v_lshl_add_u32 v{t3}, v{t5}, 8, v{t3}")
    a(f"v_and_b32 v{t5}, 24, v{t1}")
    a(f"v_lshl_add_u32 v{t3}, v{t5}, 3, v{t3}")
    a(f"v_and_b32 v{t5}, 3, v{t1}")
    a(f"v_lshl_add_u32 v{t3}, v{t5}, 4, v{t3}")
    a(f"v_lshlrev_b32 v{t5}, 4, v{t1}")
    a(f"v_add_u32 v{t5}, {4096-1024}, v{t5}")
    a(f"v_cmp_gt_u32 vcc, 64, v{t1}")
    a(f"s_mov_b32 s30, {48*5120}")
    a(f"v_mul_lo_u32 v{t2}, v{t2}, s30")
    a(f"v_cndmask_b32 v{t3}, v{t5}, v{t3}, vcc")
    a(f"v_lshl_add_u32 v{t3}, v{t4}, 8, v{t3}")
    a(f"v_add_u32 v{t3}, v{t3}, v{t2}")
    a("s_mul_i32 s30, s37, 5120")
    a(f"s_add_u32 s30, s30, {WS_U:#x}")
    for q in range(1, 4):
        a(f"s_xor_b32 s31, s{sw}, {q}")
        a("s_lshl_b32 s31, s31, 14")
        a(f"v_add_u32 v{HF+60+q}, s31, v{vh}")
    a("s_waitcnt lgkmcnt(0)")
    a("s_barrier")
    for q in range(1, 4):
        for i in range(4):
            a(f"ds_read_b128 {vr(HF+(q-1)*16+i*4,4)}, v{HF+60+q} offset:{(q-1)*4096+i*1024}")
    for q in range(1, 4):
        a(f"s_waitcnt lgkmcnt({4*(3-q)})")
        for i in range(0, 16, 2):
            a(f"v_pk_add_f32 {vr(ACC+i,2)}, {vr(ACC+i,2)}, {vr(HF+(q-1)*16+i,2)}")
    c0 = -2.0 * 0.7978845608028654 * 1.4426950408889634
    c1 = c0 * 0.044715
    a(f"s_mov_b32 s40, {f32(c1):#x}")
    a(f"s_mov_b32 s41, {f32(c1):#x}")
    a(f"v_mov_b32 v{t0}, {f32(c0):#x}")
    a(f"v_mov_b32 v{t1}, {f32(c0):#x}")
    W = ACC + 16
    for half in range(2):
        b = half * 8
        for i in range(b, b+8, 2): a(f"v_pk_mul_f32 {vr(W+i,2)}, {vr(ACC+i,2)}, {vr(ACC+i,2)}")
        for i in range(b, b+8, 2): a(f"v_pk_fma_f32 {vr(W+i,2)}, {vr(W+i,2)}, s[40:41], {vr(t0,2)}")
        for i in range(b, b+8, 2): a(f"v_pk_mul_f32 {vr(W+i,2)}, {vr(W+i,2)}, {vr(ACC+i,2)}")
        for i in range(b, b+8): a(f"v_exp_f32 v{W+i}, v{W+i}")
        for i in range(b, b+8, 2): a(f"v_pk_add_f32 {vr(W+i,2)}, {vr(W+i,2)}, 1.0 op_sel_hi:[1,0]")
        for i in range(b, b+8): a(f"v_rcp_f32 v{W+i}, v{W+i}")
        for i in range(b, b+8, 2): a(f"v_pk_mul_f32 {vr(W+i,2)}, {vr(W+i,2)}, {vr(ACC+i,2)}")
        for i in range(4): a(f"v_cvt_pk_bf16_f32 v{W+16+half*4+i}, v{W+b+2*i}, v{W+b+2*i+1}")
        a(f"buffer_store_dwordx4 {vr(W+16+half*4,4)}, v{t3}, s[20:23], s30 offen offset:{half*512}")
    a.label("L_g1_end")
    a("s_endpgm")
    return descriptor("g1_kernel", 168, 168)
```

```python
from common import *

DEP = 6
def gen_g2(a):
    kernel_head(a, "g2_kernel")
    a(f"s_load_dwordx4 s[4:7], s[0:1], {KA['w2']}")
    a(f"s_load_dwordx2 s[8:9], s[0:1], {KA['ws']}")
    a(f"s_load_dwordx2 s[10:11], s[0:1], {KA['out']}")
    a("s_cmp_ge_u32 s2, 256")
    a("s_cbranch_scc1 L_g2_end")
    UF = 0
    ACC = 120
    BF = 200
    T = 232
    vl, vg, vi, vu = T, T+1, T+2, T+3
    vd = T+4
    vtr = T+8
    t0, t1, t2, t3, t4, t5 = T+12, T+13, T+14, T+15, T+16, T+17
    vb2 = T+18
    XF = ACC + 20
    IDN = ACC + 40
    CB = ACC + 44
    sw, sdt, sst = 24, 25, 26
    a(f"v_and_b32 v{vl}, 63, v0")
    a(f"v_lshrrev_b32 v{t0}, 6, v0")
    a(f"v_lshrrev_b32 v{t1}, 3, v{vl}")
    a(f"v_readfirstlane_b32 s{sw}, v{t0}")
    a(f"v_lshrrev_b32 v{vg}, 4, v{vl}")
    a(f"v_and_b32 v{vi}, 15, v{vl}")
    a("s_and_b32 s30, s2, 1")
    a("s_lshl_b32 s30, s30, 2")
    a("s_bfe_u32 s31, s2, 0x20003")
    a(f"s_add_u32 s{sdt}, s30, s31")
    a("s_bfe_u32 s30, s2, 0x20001")
    a("s_lshl_b32 s30, s30, 3")
    a("s_lshr_b32 s31, s2, 5")
    a(f"s_add_u32 s{sst}, s30, s31")
    a(f"v_and_b32 v{t2}, 7, v{vl}")
    a(f"v_and_b32 v{t3}, 2, v{t1}")
    a(f"v_xor_b32 v{t2}, v{t2}, v{t3}")
    a(f"v_lshlrev_b32 v{t1}, 12, v{t1}")
    a(f"v_lshl_add_u32 v{vd}, v{t2}, 4, v{t1}")
    a(f"v_xor_b32 v{t2}, 64, v{vd}")
    a(f"v_add_u32 v{vd+1}, {1*(32768-1024)}, v{t2}")
    a(f"v_add_u32 v{vd+2}, {2*(32768-1024)}, v{vd}")
    a(f"v_add_u32 v{vd+3}, {3*(32768-1024)}, v{t2}")
    a(f"v_lshlrev_b32 v{vu}, 4, v{vl}")
    swk, su, sm0, su2 = 27, 28, 29, 33
    a(f"s_mul_i32 s{swk}, s{sw}, {384*4096}")
    a(f"s_lshl_b32 s30, s{sst}, 7")
    a(f"s_add_u32 s{swk}, s{swk}, s30")
    a(f"s_mul_i32 s{su}, s{sdt}, {48*5120}")
    a(f"s_mul_i32 s30, s{sw}, {12*5120}")
    a(f"s_add_u32 s{su}, s{su}, s30")
    a(f"s_add_u32 s{su}, s{su}, {WS_U:#x}")
    a(f"s_add_u32 s{su2}, s{su}, 4096")
    a(f"s_mul_i32 s{sm0}, s{sw}, {DEP*4096}")
    a(f"s_mov_b32 m0, s{sm0}")
    ssb = 34
    a(f"s_lshl_b32 s30, s{sst}, 2")
    a(f"s_add_u32 s{ssb}, s30, s{sw}")
    AX = BF
    a(f"v_lshrrev_b32 v{t0}, 2, v{vi}")
    a(f"v_and_b32 v{t1}, 3, v{vi}")
    a(f"v_lshl_add_u32 v{t0}, v{t0}, 3, v{t1}")
    a(f"s_mul_i32 s30, s{sdt}, 80")
    a(f"v_add_u32 v{t0}, s30, v{t0}")
    a(f"v_add_u32 v{t1}, s30, v{vi}")
    a(f"v_cmp_gt_u32 vcc, 2, v{vg}")
    a(f"v_lshlrev_b32 v{t4}, 9, v{vg}")
    a(f"v_mov_b32 v{t5}, {OOB:#x}")
    a(f"v_cndmask_b32 v{t4}, v{t5}, v{t4}, vcc")
    for j in range(5):
        if j < 4: a(f"v_add_u32 v{t2}, {32*(j>>1)+4*(j&1)}, v{t0}")
        else: a(f"v_add_u32 v{t2}, 64, v{t1}")
        a(f"v_lshrrev_b32 v{t3}, 5, v{t2}")
        a(f"v_and_b32 v{t2}, 31, v{t2}")
        a(f"v_lshl_add_u32 v{t2}, v{t2}, 4, v{t4}")
        a(f"v_lshl_add_u32 v{AX+j}, v{t3}, 17, v{t2}")
    a(f"s_lshl_b32 s35, s{ssb}, 10")
    a(f"s_add_u32 s35, s35, {WS_X1T:#x}")
    a(f"v_lshlrev_b32 v{t0}, 1, v{vi}")
    a(f"s_lshl_b32 s36, s{ssb}, 5")
    a("s_waitcnt lgkmcnt(0)")
    srd(a, 12, 4, F*S*2)
    srd(a, 16, 6, S*2)
    srd(a, 20, 8, WS_END)
    srd(a, 40, 10, S*D*2)
    def dma(t):
        o = [f"buffer_load_dwordx4 v{vd+m}, s[12:15], s{swk} offen offset:{m*1024} lds" for m in range(4)]
        o.append(f"s_add_u32 s{swk}, s{swk}, {32*4096}")
        if (t + 1) % DEP == 0: o.append(f"s_mov_b32 m0, s{sm0}")
        else: o.append("s_add_u32 m0, m0, 4096")
        return o
    def ldu(t):
        r = UF + (t % DEP) * 20
        o = [f"buffer_load_dwordx4 {vr(r+4*j,4)}, v{vu}, s[20:23], s{su} offen offset:{j*1024}" for j in range(4)]
        o.append(f"buffer_load_dwordx4 {vr(r+16,4)}, v{vu}, s[20:23], s{su2} offen")
        o += [f"s_add_u32 s{su}, s{su}, 5120", f"s_add_u32 s{su2}, s{su2}, 5120"]
        return o
    for x in dma(0) + ldu(0): a(x)
    for j in range(5):
        a(f"buffer_load_dwordx4 {vr(XF+4*j,4)}, v{AX+j}, s[20:23], s35 offen")
    a(f"buffer_load_ushort v{vb2}, v{t0}, s[16:19], s36 offen")
    for t in range(1, DEP):
        for x in dma(t) + ldu(t): a(x)
    a(f"v_lshlrev_b32 v{t0}, 3, v{vg}")
    a(f"v_sub_u32 v{t0}, v{vi}, v{t0}")
    a(f"v_mov_b32 v{t3}, 0x3f80")
    a(f"v_mov_b32 v{t4}, 0x3f800000")
    for k2 in range(4):
        a(f"v_cmp_eq_i32 vcc, {2*k2}, v{t0}")
        a(f"v_cmp_eq_i32 s[38:39], {2*k2+1}, v{t0}")
        a("s_nop 0")
        a(f"v_cndmask_b32 v{IDN+k2}, 0, v{t3}, vcc")
        a(f"v_cndmask_b32 v{IDN+k2}, v{IDN+k2}, v{t4}, s[38:39]")
    a(f"v_bfe_u32 v{t0}, v{vl}, 2, 2")
    a(f"v_lshl_add_u32 v{t1}, v{vg}, 3, v{t0}")
    a(f"v_lshlrev_b32 v{t1}, 7, v{t1}")
    a(f"v_and_b32 v{t2}, 3, v{vl}")
    a(f"v_lshl_add_u32 v{t1}, v{t2}, 3, v{t1}")
    a(f"v_lshrrev_b32 v{t0}, 1, v{t0}")
    a(f"v_and_b32 v{t2}, 1, v{vg}")
    a(f"v_lshl_add_u32 v{t0}, v{t2}, 1, v{t0}")
    a(f"v_xor_b32 v{t0}, s{sw}, v{t0}")
    a(f"v_lshl_add_u32 v{t1}, v{t0}, 5, v{t1}")
    a(f"v_add_u32 v{vtr}, s{sm0}, v{t1}")
    for sb in range(1, 4): a(f"v_xor_b32 v{vtr+sb}, {sb*32}, v{vtr}")
    a(f"s_waitcnt vmcnt({9*(DEP-1)})")
    def reads(t):
        p = BF + (t & 1) * 16
        return [f"ds_read_b64_tr_b16 {vr(p+sb*4+h*2,2)}, v{vtr+sb} offset:{(t%DEP)*4096+h*512}" for sb in range(4) for h in range(2)]
    for x in reads(0): a(x)
    for i in range(4): a(f"v_lshlrev_b32 v{CB+i}, 16, v{vb2}")
    a("s_nop 1")
    for j in range(5):
        a(f"v_mfma_f32_16x16x32_bf16 {vr(ACC+j*4,4)}, {vr(XF+4*j,4)}, {vr(IDN,4)}, {vr(CB,4)}")
    NS = 12
    for t in range(NS):
        p = BF + (t & 1) * 16
        ur = UF + (t % DEP) * 20
        last = min(t + DEP - 1, NS - 1)
        rd = []
        if t + 1 < NS:
            a(f"s_waitcnt vmcnt({9*(last-(t+1))}) lgkmcnt(0)")
            rd = reads(t + 1)
        else:
            a("s_waitcnt lgkmcnt(0)")
        mf = []
        for sb in range(4):
            for j in range(5):
                acc = vr(ACC + (sb*5+j)*4, 4)
                c = "0" if (t == 0 and sb > 0) else acc
                mf.append(f"v_mfma_f32_16x16x32_bf16 {acc}, {vr(ur+4*j,4)}, {vr(p+sb*4,4)}, {c}")
        fill = rd + (dma(t + DEP) if t + DEP < NS else [])
        for i, m in enumerate(mf):
            a(m)
            if i < len(fill): a(fill[i])
        if t + DEP < NS:
            for x in ldu(t + DEP): a(x)
    a(f"v_add_u32 v{t0}, s{sm0}, v{vu}")
    for q in range(1, 4):
        a(f"s_xor_b32 s31, s{sw}, {q}")
        a(f"s_mul_i32 s31, s31, {DEP*4096}")
        a(f"v_add_u32 v{vtr+q}, s31, v{vu}")
    for q in range(1, 4):
        for j in range(5):
            a(f"ds_write_b128 v{t0}, {vr(ACC+(q*5+j)*4,4)} offset:{((q-1)*5+j)*1024}")
    a(f"v_mul_u32_u24 v{t1}, 1280, v{vi}")
    a(f"v_lshl_add_u32 v{t2}, v{vg}, 3, v{t1}")
    a(f"v_lshl_add_u32 v{t1}, v{vg}, 4, v{t1}")
    a(f"s_mul_i32 s30, s{ssb}, {16*1280}")
    a(f"s_mul_i32 s31, s{sdt}, 160")
    a("s_add_u32 s30, s30, s31")
    a("s_waitcnt lgkmcnt(0)")
    a("s_barrier")
    for q in range(1, 4):
        for j in range(5):
            a(f"ds_read_b128 {vr(UF+((q-1)*5+j)*4,4)}, v{vtr+q} offset:{((q-1)*5+j)*1024}")
    for q in range(1, 4):
        a(f"s_waitcnt lgkmcnt({5*(3-q)})")
        for i in range(0, 20, 2):
            a(f"v_pk_add_f32 {vr(ACC+i,2)}, {vr(ACC+i,2)}, {vr(UF+(q-1)*20+i,2)}")
    for i in range(10):
        a(f"v_cvt_pk_bf16_f32 v{BF+i}, v{ACC+2*i}, v{ACC+2*i+1}")
    a(f"buffer_store_dwordx4 {vr(BF,4)}, v{t1}, s[40:43], s30 offen")
    a(f"buffer_store_dwordx4 {vr(BF+4,4)}, v{t1}, s[40:43], s30 offen offset:64")
    a(f"buffer_store_dwordx2 {vr(BF+8,2)}, v{t2}, s[40:43], s30 offen offset:128")
    a.label("L_g2_end")
    a("s_endpgm")
    return descriptor("g2_kernel", 256, 256)
```

```python
from common import *

R = 12
NST = 20
def gen_qkv(a):
    kernel_head(a, "qkv0_kernel")
    a(f"s_load_dwordx2 s[4:5], s[0:1], {KA['x']}")
    a("s_branch L_qkv")
    kernel_head(a, "qkv1_kernel")
    a(f"s_load_dwordx2 s[4:5], s[0:1], {KA['out']}")
    a.label("L_qkv")
    a(f"s_load_dwordx2 s[6:7], s[0:1], {KA['wqkv']}")
    a(f"s_load_dwordx2 s[8:9], s[0:1], {KA['ws']}")
    a("s_cmp_ge_u32 s2, 256")
    a("s_cbranch_scc1 L_qkv_end")
    X = 0
    ACC = 96
    CS = 160
    T = 168
    vl, vg, vi = T, T+1, T+2
    vx, vW0, vW1 = T+3, T+4, T+5
    vtr = T+6
    vsum, vsq = T+16, T+18
    vone = T+20
    t0, t1, t2, t3 = T+24, T+25, T+26, T+27
    E = T+28
    sw, srt, spt = 24, 25, 26
    sx0, sx1, swk = 27, 28, 29
    a(f"v_and_b32 v{vl}, 63, v0")
    a(f"v_lshrrev_b32 v{t0}, 6, v0")
    a(f"v_lshrrev_b32 v{vg}, 4, v{vl}")
    a(f"v_readfirstlane_b32 s{sw}, v{t0}")
    a(f"v_and_b32 v{vi}, 15, v{vl}")
    a("s_and_b32 s30, s2, 3")
    a("s_lshl_b32 s30, s30, 2")
    a("s_bfe_u32 s31, s2, 0x20003")
    a(f"s_add_u32 s{srt}, s30, s31")
    a("s_bfe_u32 s30, s2, 0x10002")
    a("s_lshl_b32 s30, s30, 3")
    a("s_lshr_b32 s31, s2, 5")
    a(f"s_add_u32 s{spt}, s30, s31")
    a(f"v_lshrrev_b32 v{t0}, 2, v{vi}")
    a(f"v_and_b32 v{t1}, 3, v{vi}")
    a(f"v_lshl_add_u32 v{t0}, v{t0}, 3, v{t1}")
    a(f"v_mul_u32_u24 v{t0}, 1280, v{t0}")
    a(f"v_lshl_add_u32 v{vx}, v{vg}, 4, v{t0}")
    a(f"s_lshl_b32 s30, s{srt}, 2")
    a(f"s_add_u32 s30, s30, s{sw}")
    a(f"s_mul_i32 s{sx0}, s30, {32*1280}")
    a(f"s_add_u32 s{sx1}, s{sx0}, 5120")
    sT = 32
    a(f"s_mov_b32 s{sT}, s30")
    a(f"s_and_b32 s30, s{sw}, 1")
    a("s_lshl_b32 s30, s30, 3")
    a(f"v_lshlrev_b32 v{t0}, 1, v{vg}")
    a(f"v_xor_b32 v{t0}, v{t0}, v{vi}")
    a(f"v_xor_b32 v{t0}, s30, v{t0}")
    a(f"v_mul_u32_u24 v{t1}, 13, v{t0}")
    a(f"v_lshrrev_b32 v{t1}, 6, v{t1}")
    a(f"v_mul_u32_u24 v{t2}, 1200, v{t1}")
    a(f"v_lshl_add_u32 v{t2}, v{t0}, 4, v{t2}")
    a(f"v_mul_u32_u24 v{t1}, 3840, v{vg}")
    a(f"v_add_u32 v{t2}, v{t2}, v{t1}")
    a(f"s_mul_i32 s30, s{spt}, 80")
    a(f"s_mul_i32 s31, s{sw}, {8*3840}")
    a("s_add_u32 s30, s30, s31")
    a(f"v_add_u32 v{t2}, s30, v{t2}")
    a(f"v_cmp_eq_u32 vcc, 15, v{t0}")
    a(f"v_mov_b32 v{t1}, {OOB:#x}")
    a(f"s_lshl_b32 m0, s{sw}, 11")
    a(f"v_cndmask_b32 v{vW0}, v{t2}, v{t1}, vcc")
    a(f"v_add_u32 v{vW1}, {4*3840-1024}, v{vW0}")
    a(f"s_mov_b32 s{swk}, 0")
    a("s_waitcnt lgkmcnt(0)")
    srd(a, 12, 4, S*D*2)
    srd(a, 16, 6, D*3*D*2)
    srd(a, 20, 8, WS_END)

    def loads(t):
        r = X + (t % R) * 8
        o = []
        o.append(f"buffer_load_dwordx4 v{vW0}, s[16:19], s{swk} offen lds")
        o.append(f"buffer_load_dwordx4 v{vW1}, s[16:19], s{swk} offen offset:1024 lds")
        o.append(f"buffer_load_dwordx4 {vr(r,4)}, v{vx}, s[12:15], s{sx0} offen offset:{t*64}")
        o.append(f"buffer_load_dwordx4 {vr(r+4,4)}, v{vx}, s[12:15], s{sx1} offen offset:{t*64}")
        if t < NST - 1:
            o.append("s_add_u32 m0, m0, 8192")
            o.append(f"s_add_u32 s{swk}, s{swk}, {32*3840}")
        return o
    for t in range(R):
        for x in loads(t): a(x)
    codes = [[0,2,5,7],[1,3,6,8],[10,12,15,17],[11,13,16,18],[4,9,14,19],[20,21,22,23],[24,25,26,27],[28,29,30,31]]
    K = [sum(c << (8*i) for i, c in enumerate(cs)) for cs in codes]
    a(f"v_bfe_u32 v{t0}, v{vl}, 2, 2")
    a(f"v_lshl_add_u32 v{t1}, v{vg}, 3, v{t0}")
    a(f"v_lshlrev_b32 v{t1}, 8, v{t1}")
    a(f"v_and_b32 v{t2}, 1, v{vg}")
    a(f"v_lshlrev_b32 v{t2}, 4, v{t2}")
    a(f"v_lshl_add_u32 v{t2}, v{t0}, 2, v{t2}")
    a(f"v_and_b32 v{t3}, 3, v{vl}")
    a(f"v_lshlrev_b32 v{t3}, 3, v{t3}")
    def traddr(dst, sreg):
        a(f"v_lshrrev_b32 v{dst}, v{t3}, {sreg}" if False else f"v_bfe_u32 v{dst}, {sreg}, v{t3}, 5")
        a(f"v_xor_b32 v{dst}, v{dst}, v{t2}")
        a(f"v_lshl_add_u32 v{dst}, v{dst}, 3, v{t1}")
    for b in range(8):
        a(f"s_mov_b32 s30, {K[b]:#x}")
        traddr(vtr + b, "s30")
    for e in range(2):
        a(f"s_mov_b32 s30, {K[e]:#x}")
        for w in range(1, 4):
            a(f"s_cmp_eq_u32 s{sw}, {w}")
            a(f"s_cselect_b32 s30, {K[2*w+e]:#x}, s30")
        traddr(vtr + 8 + e, "s30")
    for i in range(4): a(f"v_mov_b32 v{vone+i}, 0x3f803f80")
    for i in range(2):
        a(f"v_mov_b32 v{vsum+i}, 0")
        a(f"v_mov_b32 v{vsq+i}, 0")

    def reads(t):
        p = (t & 1) * 40
        o = []
        for b in range(10):
            for h in range(2):
                o.append(f"ds_read_b64_tr_b16 {ar(p+b*4+h*2,2)}, v{vtr+b} offset:{(t%8)*8192 + h*1024}")
        return o
    def bump():
        return [f"v_add_u32 v{vtr+b}, 0x10000, v{vtr+b}" for b in range(10)]
    a(f"s_waitcnt vmcnt({4*(R-1)})")
    a("s_barrier")
    for x in reads(0): a(x)
    for t in range(NST):
        p = (t & 1) * 40
        xr = X + (t % R) * 8
        mf = []
        for b in range(8):
            for j in range(2):
                acc = vr(ACC + (b*2+j)*4, 4)
                c = "0" if t == 0 else acc
                wf, xf = ar(p+b*4, 4), vr(xr+j*4, 4)
                A, B = (wf, xf) if b < 5 else (xf, wf)
                mf.append(f"v_mfma_f32_16x16x32_bf16 {acc}, {A}, {B}, {c}")
        for e in range(2):
            acc = vr(CS+e*4, 4)
            c = "0" if t == 0 else acc
            mf.append(f"v_mfma_f32_16x16x32_bf16 {acc}, {vr(vone,4)}, {ar(p+32+e*4,4)}, {c}")
        dots = []
        for k in range(4):
            for j in range(2):
                dots.append(f"v_dot2_f32_bf16 v{vsq+j}, v{xr+j*4+k}, v{xr+j*4+k}, v{vsq+j}")
                dots.append(f"v_dot2_f32_bf16 v{vsum+j}, v{xr+j*4+k}, v{vone}, v{vsum+j}")
        if t + 1 < NST:
            last = min(t + R - 1, NST - 1)
            a(f"s_waitcnt vmcnt({4*(last-(t+1))}) lgkmcnt(0)")
            a("s_barrier")
            rd = reads(t + 1)
            if (t + 1) % 8 == 0:
                for x in bump(): a(x)
        else:
            a("s_waitcnt lgkmcnt(0)")
            rd = []
        seq = []
        for i, m in enumerate(mf):
            seq.append(m)
            seq += rd[2*i:2*i+2]
            if i < 16: seq.append(dots[i])
        for x in seq: a(x)
        if t + R < NST:
            for x in loads(t + R): a(x)
    a(f"s_lshl_b32 s30, s{sw}, 7")
    a(f"v_lshl_add_u32 v{t0}, v{vi}, 2, s30")
    for q in (vsum, vsum+1, vsq, vsq+1):
        a(f"v_mov_b32 v{X+(q-vsum)}, v{q}")
    a("s_nop 1")
    for q in (vsum, vsum+1, vsq, vsq+1):
        a(f"v_permlane16_swap_b32 v{q}, v{X+(q-vsum)}")
    a(f"ds_write_b32 v{t0}, v{CS}")
    a(f"ds_write_b32 v{t0}, v{CS+4} offset:64")
    for q in (vsum, vsum+1, vsq, vsq+1):
        a(f"v_add_f32 v{q}, v{q}, v{X+(q-vsum)}")
    for q in (vsum, vsum+1, vsq, vsq+1):
        a(f"v_mov_b32 v{X+(q-vsum)}, v{q}")
    a("s_nop 1")
    for q in (vsum, vsum+1, vsq, vsq+1):
        a(f"v_permlane32_swap_b32 v{q}, v{X+(q-vsum)}")
    a("s_waitcnt lgkmcnt(0)")
    a("s_barrier")
    CQ = 8
    CV = 28
    a(f"v_lshlrev_b32 v{t1}, 4, v{vg}")
    a(f"v_lshlrev_b32 v{t2}, 2, v{vi}")
    for b in range(5): a(f"ds_read_b128 {vr(CQ+b*4,4)}, v{t1} offset:{b*64}")
    for b in range(3): a(f"ds_read_b32 v{CV+b}, v{t2} offset:{(5+b)*64}")
    for q in (vsum, vsum+1, vsq, vsq+1):
        a(f"v_add_f32 v{q}, v{q}, v{X+(q-vsum)}")
    a(f"s_mov_b32 s30, {f32(-1.0/640):#x}")
    a(f"s_mov_b32 s31, {f32(1.0/640):#x}")
    a(f"v_mov_b32 v{t3}, {f32(1e-5):#x}")
    for j in range(2):
        a(f"v_mul_f32 v{vsum+j}, s30, v{vsum+j}")
    for j in range(2):
        a(f"v_mul_f32 v{X+j}, v{vsum+j}, v{vsum+j}")
    for j in range(2):
        a(f"v_fma_f32 v{vsq+j}, v{vsq+j}, s31, -v{X+j}")
    for j in range(2):
        a(f"v_max_f32 v{vsq+j}, 0, v{vsq+j}")
    for j in range(2):
        a(f"v_add_f32 v{vsq+j}, v{vsq+j}, v{t3}")
    for j in range(2):
        a(f"v_rsq_f32 v{vsq+j}, v{vsq+j}")
    a(f"s_lshl_b32 s30, s{sw}, 8")
    a(f"v_add_u32 v{t2}, s30, v{t2}")
    a(f"v_add_u32 v{t1}, s30, v{t1}")
    for j in range(2):
        a(f"ds_write_b32 v{t2}, v{vsum+j} offset:{1024+j*64}")
        a(f"ds_write_b32 v{t2}, v{vsq+j} offset:{1024+128+j*64}")
    VM, VRr = 32, 40
    for j in range(2):
        a(f"ds_read_b128 {vr(VM+j*4,4)}, v{t1} offset:{1024+j*64}")
        a(f"ds_read_b128 {vr(VRr+j*4,4)}, v{t1} offset:{1024+128+j*64}")
    RQ, RK, RH, MU = 48, 52, 56, 60
    sc = (20 ** -0.5) * 1.4426950408889634
    a(f"v_cmp_gt_u32 vcc, 2, v{vg}")
    for j in range(2):
        a(f"v_mul_f32 v{RQ+2*j}, {f32(sc):#x}, v{vsq+j}")
        a(f"v_mov_b32 v{RK+2*j}, v{vsq+j}")
        a(f"v_mov_b32 v{MU+2*j}, v{vsum+j}")
    for j in range(2):
        a(f"v_cndmask_b32 v{RH+2*j}, v{RK+2*j}, v{RQ+2*j}, vcc")
    aQ, aK, aH, aV = 64, 65, 66, 67
    a(f"v_lshrrev_b32 v{E}, 2, v{vi}")
    a(f"v_and_b32 v{E+1}, 3, v{vi}")
    a(f"v_lshl_add_u32 v{E}, v{E}, 3, v{E+1}")
    a(f"v_and_b32 v{E+1}, 8, v{vi}")
    a(f"v_add_u32 v{E+1}, v{E+1}, v{vi}")
    a(f"v_lshrrev_b32 v{E+2}, 1, v{vg}")
    a(f"v_and_b32 v{E+3}, 1, v{vg}")
    a(f"s_lshl_b32 s30, s{spt}, 7")
    a(f"s_add_u32 s30, s30, s{sT}")
    a(f"s_lshl_b32 s30, s30, 10")
    a(f"v_lshlrev_b32 v{aQ}, 16, v{E+2}")
    a(f"v_lshl_add_u32 v{aQ}, v{E+3}, 9, v{aQ}")
    a(f"v_lshl_add_u32 v{aQ}, v{E}, 4, v{aQ}")
    a(f"v_add_u32 v{aQ}, s30, v{aQ}")
    a(f"s_mul_i32 s31, s{spt}, {2*163840}")
    a(f"s_mul_i32 s33, s{sT}, 2560")
    a("s_add_u32 s31, s31, s33")
    a(f"s_add_u32 s31, s31, {WS_KV:#x}")
    a(f"s_mov_b32 s33, 163840")
    a(f"v_mul_lo_u32 v{aK}, v{E+2}, s33")
    a(f"v_lshl_add_u32 v{aK}, v{E+3}, 9, v{aK}")
    a(f"v_lshl_add_u32 v{aK}, v{E+1}, 4, v{aK}")
    a(f"v_add_u32 v{aK}, s31, v{aK}")
    a(f"v_mul_lo_u32 v{E+4}, v{E+3}, s33")
    a(f"v_lshl_add_u32 v{E+4}, v{E+1}, 3, v{E+4}")
    a(f"s_add_u32 s34, s31, 1024")
    a(f"v_add_u32 v{E+4}, s34, v{E+4}")
    a(f"s_lshl_b32 s34, s{spt}, 15")
    a(f"s_lshl_b32 s35, s{sT}, 8")
    a("s_add_u32 s34, s34, s35")
    a(f"s_add_u32 s34, s34, {WS_QHI:#x}")
    a(f"v_lshlrev_b32 v{E+5}, 14, v{E+3}")
    a(f"v_lshl_add_u32 v{E+5}, v{E}, 3, v{E+5}")
    a(f"v_add_u32 v{E+5}, s34, v{E+5}")
    a(f"v_cndmask_b32 v{aH}, v{E+4}, v{E+5}, vcc")
    a(f"v_add_u32 v{E+4}, 64, v{E+4}")
    a(f"v_add_u32 v{E+5}, 32, v{E+5}")
    aH1 = 70
    a(f"v_cndmask_b32 v{aH1}, v{E+4}, v{E+5}, vcc")
    a(f"v_mul_u32_u24 v{E+4}, 320, v{vg}")
    a(f"v_lshl_add_u32 v{E+4}, v{vi}, 4, v{E+4}")
    a(f"s_add_u32 s34, s31, 1280")
    a(f"v_add_u32 v{aV}, s34, v{E+4}")
    a(f"v_add_u32 v{E+4}, 256, v{aV}")
    a(f"v_add_u32 v{E+5}, {163840-64}, v{aV}")
    a(f"v_cmp_gt_u32 vcc, 4, v{vi}")
    a(f"v_add_u32 v{E+6}, {163840+192}, v{aV}")
    a(f"v_mov_b32 v{E+7}, {OOB:#x}")
    a(f"v_cndmask_b32 v{aV+1}, v{E+5}, v{E+4}, vcc")
    a(f"v_cmp_gt_u32 vcc, 8, v{vi}")
    a("s_nop 1")
    a(f"v_cndmask_b32 v{aV+2}, v{E+7}, v{E+6}, vcc")
    a("s_waitcnt lgkmcnt(0)")
    P = 72
    def fin_qk(b, j, rreg):
        acc = ACC + (b*2+j)*4
        for h in range(2):
            a(f"v_pk_fma_f32 {vr(acc+2*h,2)}, {vr(CQ+b*4+2*h,2)}, {vr(MU+2*j,2)}, {vr(acc+2*h,2)} op_sel_hi:[1,0,1]")
        for h in range(2):
            a(f"v_pk_mul_f32 {vr(acc+2*h,2)}, {vr(acc+2*h,2)}, {vr(rreg+2*j,2)} op_sel_hi:[1,0]")
    n = 0
    for (b0, rreg, adr, joff) in ((2, RK, aK, 128), (0, RQ, aQ, 64)):
        for j in range(2):
            fin_qk(b0, j, rreg); fin_qk(b0+1, j, rreg)
            d = P + (n % 4) * 4; n += 1
            for e in range(2):
                acc = ACC + ((b0+e)*2+j)*4
                a(f"v_cvt_pk_bf16_f32 v{d+2*e}, v{acc}, v{acc+1}")
                a(f"v_cvt_pk_bf16_f32 v{d+2*e+1}, v{acc+2}, v{acc+3}")
            a(f"buffer_store_dwordx4 {vr(d,4)}, v{adr}, s[20:23], 0 offen offset:{j*joff}")
    for j in range(2):
        fin_qk(4, j, RH)
        acc = ACC + (8+j)*4
        d = P + 16 + 2*j
        a(f"v_cvt_pk_bf16_f32 v{d}, v{acc}, v{acc+1}")
        a(f"v_cvt_pk_bf16_f32 v{d+1}, v{acc+2}, v{acc+3}")
        a(f"buffer_store_dwordx2 {vr(d,2)}, v{aH if j == 0 else aH1}, s[20:23], 0 offen")
    CVp = 0
    for b in range(3): a(f"v_mov_b32 v{CVp+2*b}, v{CV+b}")
    for b in range(3):
        for j in range(2):
            acc = ACC + ((5+b)*2+j)*4
            for h in range(2):
                a(f"v_pk_fma_f32 {vr(acc+2*h,2)}, {vr(VM+j*4+2*h,2)}, {vr(CVp+2*b,2)}, {vr(acc+2*h,2)} op_sel_hi:[1,0,1]")
            for h in range(2):
                a(f"v_pk_mul_f32 {vr(acc+2*h,2)}, {vr(acc+2*h,2)}, {vr(VRr+j*4+2*h,2)}")
        d = CQ + b*4
        for j in range(2):
            acc = ACC + ((5+b)*2+j)*4
            a(f"v_cvt_pk_bf16_f32 v{d+2*j}, v{acc}, v{acc+1}")
            a(f"v_cvt_pk_bf16_f32 v{d+2*j+1}, v{acc+2}, v{acc+3}")
        a(f"buffer_store_dwordx4 {vr(d,4)}, v{aV+b}, s[20:23], 0 offen")
    a.label("L_qkv_end")
    a("s_endpgm")
    return descriptor("qkv0_kernel", 208+80, 208) + descriptor("qkv1_kernel", 208+80, 208)
```

```python
from common import *

def gen_wo(a):
    kernel_head(a, "wo0_kernel")
    a(f"s_load_dwordx2 s[4:5], s[0:1], {KA['x']}")
    a("s_branch L_wo")
    kernel_head(a, "wo1_kernel")
    a(f"s_load_dwordx2 s[4:5], s[0:1], {KA['out']}")
    a.label("L_wo")
    a(f"s_load_dwordx2 s[6:7], s[0:1], {KA['wo']}")
    a(f"s_load_dwordx2 s[8:9], s[0:1], {KA['ws']}")
    a("s_cmp_ge_u32 s2, 256")
    a("s_cbranch_scc1 L_wo_end")
    OF = 0
    XF = 80
    ID = 92
    ACC = 100
    BF = 120
    T = 160
    vl, vg, vi = T, T+1, T+2
    vd = T+3
    vo, vx = T+8, T+9
    vtr = T+10
    t0, t1, t2, t3, t4, t5 = T+12, T+13, T+14, T+15, T+16, T+17
    sw, srb, sct = 24, 25, 26
    a(f"v_and_b32 v{vl}, 63, v0")
    a(f"v_lshrrev_b32 v{t0}, 6, v0")
    a(f"v_lshrrev_b32 v{vg}, 4, v{vl}")
    a(f"v_readfirstlane_b32 s{sw}, v{t0}")
    a(f"v_and_b32 v{vi}, 15, v{vl}")
    a("s_and_b32 s30, s2, 7")
    a("s_lshl_b32 s30, s30, 2")
    a("s_lshr_b32 s31, s2, 6")
    a(f"s_add_u32 s{srb}, s30, s31")
    a(f"s_bfe_u32 s{sct}, s2, 0x30003")
    a(f"s_mul_i32 s33, s{sct}, 160")
    for m in range(5):
        a(f"v_add_u32 v{t0}, {64*m}, v{vl}")
        a(f"v_mul_u32_u24 v{t1}, 6554, v{t0}")
        a(f"v_lshrrev_b32 v{t1}, 16, v{t1}")
        a(f"v_mul_u32_u24 v{t1}, {1280-160}, v{t1}")
        a(f"v_lshl_add_u32 v{t1}, v{vl}, 4, v{t1}")
        a(f"v_add_u32 v{vd+m}, s33, v{t1}")
    a(f"v_lshlrev_b32 v{vo}, 4, v{vl}")
    ssb = 27
    a(f"s_lshl_b32 s30, s{srb}, 2")
    a(f"s_add_u32 s{ssb}, s30, s{sw}")
    so, swk = 28, 29
    a(f"s_mul_i32 s{so}, s{ssb}, 20480")
    a(f"s_add_u32 s{so}, s{so}, {WS_O:#x}")
    a(f"s_mul_i32 s{swk}, s{sw}, 40960")
    a(f"s_mul_i32 s30, s{sw}, 5120")
    a("s_mov_b32 m0, s30")
    a(f"v_mul_u32_u24 v{t0}, 1280, v{vi}")
    a(f"v_lshl_add_u32 v{vx}, v{vg}, 4, v{t0}")
    a(f"s_mul_i32 s34, s{ssb}, {16*1280}")
    a("s_add_u32 s34, s34, s33")
    a(f"v_cmp_gt_u32 vcc, 2, v{vg}")
    a(f"v_mov_b32 v{t1}, {OOB:#x}")
    a("s_waitcnt lgkmcnt(0)")
    srd(a, 12, 4, S*D*2)
    srd(a, 16, 6, D*D*2)
    srd(a, 20, 8, WS_END)
    a(f"v_cndmask_b32 v{t2}, v{t1}, v{vx}, vcc")
    for rho in range(5):
        for m in range(5):
            if m < 4: a(f"buffer_load_dwordx4 v{vd+m}, s[16:19], s{swk} offen offset:{m*1024} lds")
            else:
                a("s_add_u32 m0, m0, 4096")
                a(f"s_add_u32 s35, s{swk}, 4096")
                a(f"buffer_load_dwordx4 v{vd+m}, s[16:19], s35 offen lds")
        for k in range(4):
            a(f"buffer_load_dwordx4 {vr(OF+(rho*4+k)*4,4)}, v{vo}, s[20:23], s{so} offen offset:{k*1024}")
        if rho == 0:
            a(f"buffer_load_dwordx4 {vr(XF,4)}, v{vx}, s[12:15], s34 offen")
            a(f"buffer_load_dwordx4 {vr(XF+4,4)}, v{vx}, s[12:15], s34 offen offset:64")
            a(f"buffer_load_dwordx4 {vr(XF+8,4)}, v{t2}, s[12:15], s34 offen offset:128")
        if rho < 4:
            a(f"s_add_u32 m0, m0, {4*5120-4096}")
            a(f"s_add_u32 s{swk}, s{swk}, {4*40960}")
            a(f"s_add_u32 s{so}, s{so}, 4096")
    a(f"v_lshlrev_b32 v{t0}, 3, v{vg}")
    a(f"v_sub_u32 v{t0}, v{vi}, v{t0}")
    a(f"v_mov_b32 v{t3}, 0x3f80")
    a(f"v_mov_b32 v{t4}, 0x3f800000")
    for e in range(2):
        for k2 in range(4):
            a(f"v_cmp_eq_i32 vcc, {2*k2-16*e}, v{t0}")
            a(f"v_cmp_eq_i32 s[36:37], {2*k2+1-16*e}, v{t0}")
            a("s_nop 0")
            a(f"v_cndmask_b32 v{ID+e*4+k2}, 0, v{t3}, vcc")
            a(f"v_cndmask_b32 v{ID+e*4+k2}, v{ID+e*4+k2}, v{t4}, s[36:37]")
    a(f"v_bfe_u32 v{t0}, v{vl}, 2, 2")
    a(f"v_lshl_add_u32 v{t0}, v{vg}, 3, v{t0}")
    a(f"v_and_b32 v{t1}, 1, v{vg}")
    a(f"v_lshl_add_u32 v{t2}, v{t1}, 2, v{t0}")
    a(f"v_xor_b32 v{t3}, 4, v{t2}")
    a(f"v_and_b32 v{t4}, 3, v{vl}")
    a(f"v_lshlrev_b32 v{t4}, 3, v{t4}")
    a(f"v_mul_u32_u24 v{t2}, 160, v{t2}")
    a(f"v_mul_u32_u24 v{t3}, 160, v{t3}")
    a(f"v_add_u32 v{vtr}, v{t2}, v{t4}")
    a(f"v_add_u32 v{vtr+1}, v{t3}, v{t4}")
    def reads(t):
        p = BF + (t & 1) * 20
        return [f"ds_read_b64_tr_b16 {vr(p+b*4+h*2,2)}, v{vtr+h} offset:{(t%12)*5120+b*32}" for b in range(5) for h in range(2)]
    a("s_waitcnt vmcnt(36)")
    a("s_barrier")
    for x in reads(0): a(x)
    for b in range(5):
        a(f"v_mfma_f32_16x16x32_bf16 {vr(ACC+b*4,4)}, {vr(XF+(b>>1)*4,4)}, {vr(ID+(b&1)*4,4)}, 0")
    for t in range(20):
        p = BF + (t & 1) * 20
        rd = []
        if t + 1 < 20:
            if (t + 1) % 4 == 0:
                a(f"s_waitcnt vmcnt({9*(4-(t+1)//4)}) lgkmcnt(0)")
                a("s_barrier")
            else:
                a("s_waitcnt lgkmcnt(0)")
            if t + 1 == 12:
                a(f"v_add_u32 v{vtr}, {12*5120}, v{vtr}")
                a(f"v_add_u32 v{vtr+1}, {12*5120}, v{vtr+1}")
            rd = reads(t + 1)
        else:
            a("s_waitcnt lgkmcnt(0)")
        for x in rd[:4]: a(x)
        for b in range(5):
            a(f"v_mfma_f32_16x16x32_bf16 {vr(ACC+b*4,4)}, {vr(OF+t*4,4)}, {vr(p+b*4,4)}, {vr(ACC+b*4,4)}")
            for x in rd[4+2*b:6+2*b]: a(x)
    aT = 0
    a(f"s_mul_i32 s30, s{sct}, 80")
    a(f"v_lshrrev_b32 v{t0}, 1, v{vg}")
    a(f"v_and_b32 v{t1}, 1, v{vg}")
    a(f"v_lshlrev_b32 v{t0}, 9, v{t0}")
    a(f"v_lshl_add_u32 v{t0}, v{t1}, 3, v{t0}")
    a(f"v_add_u32 v{t1}, s30, v{vi}")
    for b in range(5):
        a(f"v_add_u32 v{t2}, {16*b}, v{t1}")
        a(f"v_lshrrev_b32 v{t3}, 5, v{t2}")
        a(f"v_and_b32 v{t2}, 31, v{t2}")
        a(f"v_lshl_add_u32 v{t2}, v{t2}, 4, v{t0}")
        a(f"v_lshl_add_u32 v{aT+b}, v{t3}, 17, v{t2}")
    a(f"s_lshl_b32 s30, s{ssb}, 10")
    a(f"s_add_u32 s31, s30, {WS_HT:#x}")
    a(f"s_add_u32 s30, s30, {WS_X1T:#x}")
    XP = 8
    for b in range(5):
        a(f"v_cvt_pk_bf16_f32 v{XP+2*b}, v{ACC+4*b}, v{ACC+4*b+1}")
        a(f"v_cvt_pk_bf16_f32 v{XP+2*b+1}, v{ACC+4*b+2}, v{ACC+4*b+3}")
    for b in range(5):
        for h in range(2):
            a(f"v_lshlrev_b32 v{ACC+4*b+2*h}, 16, v{XP+2*b+h}")
            a(f"v_and_b32 v{ACC+4*b+2*h+1}, 0xffff0000, v{XP+2*b+h}")
    SM, SQ = 20, 24
    for h in range(2):
        a(f"v_pk_add_f32 {vr(SM+2*h,2)}, {vr(ACC+2*h,2)}, {vr(ACC+4+2*h,2)}")
        a(f"v_pk_mul_f32 {vr(SQ+2*h,2)}, {vr(ACC+2*h,2)}, {vr(ACC+2*h,2)}")
    for b in range(1, 5):
        for h in range(2):
            if b > 1: a(f"v_pk_add_f32 {vr(SM+2*h,2)}, {vr(SM+2*h,2)}, {vr(ACC+4*b+2*h,2)}")
            a(f"v_pk_fma_f32 {vr(SQ+2*h,2)}, {vr(ACC+4*b+2*h,2)}, {vr(ACC+4*b+2*h,2)}, {vr(SQ+2*h,2)}")
    for sh in (8, 4, 2, 1):
        for r in range(8):
            a(f"v_add_f32_dpp v{SM+r}, v{SM+r}, v{SM+r} row_ror:{sh} row_mask:0xf bank_mask:0xf")
    PB = 28
    a(f"v_mov_b32 v{PB}, v{SM}")
    a(f"v_mov_b32 v{PB+1}, v{SQ}")
    for r in range(1, 4):
        a(f"v_cmp_eq_u32 vcc, {r}, v{vi}")
        a("s_nop 1")
        a(f"v_cndmask_b32 v{PB}, v{PB}, v{SM+r}, vcc")
        a(f"v_cndmask_b32 v{PB+1}, v{PB+1}, v{SQ+r}, vcc")
    a(f"v_min_u32 v{PB+1}, -2, v{PB+1}")
    a(f"v_lshl_add_u32 v{t0}, v{vg}, 2, v{vi}")
    a(f"v_lshlrev_b32 v{t0}, 6, v{t0}")
    a(f"v_cmp_gt_u32 vcc, 4, v{vi}")
    a(f"v_mov_b32 v{t1}, {OOB:#x}")
    a(f"s_lshl_b32 s33, s{ssb}, 10")
    a(f"s_add_u32 s33, s33, {WS_STAT:#x}")
    a(f"s_lshl_b32 s34, s{sct}, 3")
    a("s_add_u32 s34, s34, s33")
    a(f"v_cndmask_b32 v{t0}, v{t1}, v{t0}, vcc")
    a(f"buffer_store_dwordx2 {vr(PB,2)}, v{t0}, s[20:23], s34 offen sc1")
    for b in range(5):
        a(f"buffer_store_dwordx2 {vr(XP+2*b,2)}, v{aT+b}, s[20:23], s30 offen")
    G = 32
    a("s_mov_b32 s35, 0x40000")
    a.label("L_wo_poll")
    a(f"buffer_load_dwordx4 {vr(G,4)}, v{vo}, s[20:23], s33 offen sc1")
    a("s_waitcnt vmcnt(0)")
    a(f"v_cmp_eq_u32 vcc, -1, v{G+1}")
    a(f"v_cmp_eq_u32 s[36:37], -1, v{G+3}")
    a("s_sub_u32 s35, s35, 1")
    a("s_cbranch_scc1 L_wo_go")
    a("s_or_b64 vcc, vcc, s[36:37]")
    a("s_cbranch_scc1 L_wo_poll")
    a.label("L_wo_go")
    a(f"v_pk_add_f32 {vr(G,2)}, {vr(G,2)}, {vr(G+2,2)}")
    a("s_nop 1")
    for qp in ("[1,0,3,2]", "[2,3,0,1]"):
        for r in range(2):
            a(f"v_add_f32_dpp v{G+r}, v{G+r}, v{G+r} quad_perm:{qp} row_mask:0xf bank_mask:0xf")
        a("s_nop 0")
    a(f"v_mul_f32 v{G}, {f32(-1.0/640):#x}, v{G}")
    a(f"v_mul_f32 v{G+2}, v{G}, v{G}")
    a(f"s_mov_b32 s36, {f32(1.0/640):#x}")
    a(f"v_fma_f32 v{G+1}, v{G+1}, s36, -v{G+2}")
    a(f"v_max_f32 v{G+1}, 0, v{G+1}")
    a(f"v_add_f32 v{G+2}, {f32(1e-5):#x}, v{G+1}")
    a(f"s_mov_b32 s36, {f32(1e-5):#x}")
    a(f"v_fma_f32 v{G+1}, v{G+2}, s36, v{G+1}")
    a(f"v_rsq_f32 v{G+1}, v{G+1}")
    a("s_nop 1")
    MB, RB = 36, 40
    for r in range(4):
        a(f"v_mov_b32_dpp v{MB+r}, v{G} row_newbcast:{4*r} row_mask:0xf bank_mask:0xf")
        a(f"v_mov_b32_dpp v{RB+r}, v{G+1} row_newbcast:{4*r} row_mask:0xf bank_mask:0xf")
    HP = 44
    for b in range(5):
        for h in range(2):
            a(f"v_pk_add_f32 {vr(ACC+4*b+2*h,2)}, {vr(ACC+4*b+2*h,2)}, {vr(MB+2*h,2)}")
        for h in range(2):
            a(f"v_pk_mul_f32 {vr(ACC+4*b+2*h,2)}, {vr(ACC+4*b+2*h,2)}, {vr(RB+2*h,2)}")
        a(f"v_cvt_pk_bf16_f32 v{HP+2*b}, v{ACC+4*b}, v{ACC+4*b+1}")
        a(f"v_cvt_pk_bf16_f32 v{HP+2*b+1}, v{ACC+4*b+2}, v{ACC+4*b+3}")
        a(f"buffer_store_dwordx2 {vr(HP+2*b,2)}, v{aT+b}, s[20:23], s31 offen")
    a.label("L_wo_end")
    a("s_endpgm")
    return descriptor("wo0_kernel", 184, 184) + descriptor("wo1_kernel", 184, 184)
```

```python
import sys, os
sys.path.insert(0, os.path.dirname(os.path.abspath(__file__)))
from common import *
from k_qkv import gen_qkv
from k_attn import gen_attn
from k_wo import gen_wo
from k_g1 import gen_g1
from k_g2 import gen_g2
NAME = "interleave_layers__softmax_full_mha__mixer_token_mlp__prompt"
ref = open(f"cdna_kernels/{NAME}.s.ref").read().split("\n")
hdr = [l for l in ref if l.startswith(";") and "@launch" not in l and "Override launch" not in l and "grid=ceil" not in l]
launches = []
for L in (0, 1):
    launches += [
        f"; @launch kernel=qkv{L}_kernel grid=(256,1,1) block=(256,1,1) lds=163840",
        f"; @launch kernel=attn_kernel grid=(256,1,1) block=(512,1,1) lds=163840",
        f"; @launch kernel=wo{L}_kernel grid=(256,1,1) block=(256,1,1) lds=102400",
        f"; @launch kernel=g1_kernel grid=(240,1,1) block=(256,1,1) lds=65536",
        f"; @launch kernel=g2_kernel grid=(256,1,1) block=(256,1,1) lds=98304",
    ]
a = Asm()
desc = ""
for g in (gen_qkv, gen_attn, gen_wo, gen_g1, gen_g2):
    desc += ".p2align 6\n" + g(a).replace(".end_amdhsa_kernel\n.amdhsa_kernel", ".end_amdhsa_kernel\n.p2align 6\n.amdhsa_kernel")
errs = check_hazards(a.lines)
for e in errs: print(e)
out = "\n".join(hdr + launches) + "\n" + '.amdgcn_target "amdgcn-amd-amdhsa--gfx950"\n.text\n' + a.text() + '.section .rodata,"a"\n' + desc
dst = sys.argv[1] if len(sys.argv) > 1 else f"cdna_kernels/{NAME}.s"
open(dst, "w").write(out)
print("wrote", dst, len(out), "bytes;", len(errs), "hazards")
```
